```python
import torch

def _softmax(x, axis=-1):
    return torch.softmax(x, dim=axis)
def _gelu(x):
    return torch.nn.functional.gelu(x, approximate="tanh")
def _silu(x):
    return torch.nn.functional.silu(x)
def _sigmoid(x):
    return torch.sigmoid(x)
def _layernorm(x, axis=-1, eps=1e-5):
    m = x.mean(dim=axis, keepdim=True)
    v = x.var(dim=axis, keepdim=True, unbiased=False)
    return (x - m) / torch.sqrt(v + eps)
def _scatter_add(tgt, idx, src, axis=0):
    return tgt.clone().index_add_(axis, idx, src)
def _segment_sum(src, seg, n):
    out = torch.zeros((n,) + src.shape[1:], dtype=src.dtype)
    return out.index_add_(0, seg, src)
def _pad(x, pw):
    flat = tuple(v for pair in reversed(pw) for v in pair)
    return torch.nn.functional.pad(x, flat)

kernel_name = 'interleave_layers__softmax_full_mha__dense_activation_mish__prompt'

def setup_inputs():

    _w = (lambda a: (lambda t: t.to(torch.bfloat16) if t.is_floating_point() else t)(torch.as_tensor(a)))
    def _A_setup():
        B, S, D = 1, 2048, 512
        return {
            "x": _w((lambda *s: torch.randn(*s, dtype=torch.bfloat16) * 0.05)(B, S, D)),
            "wqkv": _w((lambda *s: torch.randn(*s, dtype=torch.bfloat16) * 0.05)(D, 3 * D)),
            "wo": _w((lambda *s: torch.randn(*s, dtype=torch.bfloat16) * 0.05)(D, D)),
        }
    _A_in = _A_setup()

    def _B_setup():
        B, S, D, F = 1, 2048, 512, 1792
        return {
            "x": _w((lambda *s: torch.randn(*s, dtype=torch.bfloat16) * 0.05)(B, S, D)),
            "w1": _w((lambda *s: torch.randn(*s, dtype=torch.bfloat16) * 1.6)(D, F) * (D ** -0.5)),
            "b1": _w((lambda *s: torch.randn(*s, dtype=torch.bfloat16) * 0.4)(F)),
            "w2": _w((lambda *s: torch.randn(*s, dtype=torch.bfloat16) * 0.2)(F, D) * (F ** -0.5)),
        }
    _B_in = _B_setup()

    return {
        "A_x": _A_in["x"],
        "A_wqkv": _A_in["wqkv"],
        "A_wo": _A_in["wo"],
        "B_x": _B_in["x"],
        "B_w1": _B_in["w1"],
        "B_b1": _B_in["b1"],
        "B_w2": _B_in["w2"],
    }

def reference(A_x, A_wqkv, A_wo, B_x, B_w1, B_b1, B_w2):
    def _A_ref(x, wqkv, wo):
        B, S, D = x.shape
        H = 32; Dh = D // H
        qkv = (lambda x, *d: x.permute(*d))((x @ wqkv).reshape(B, S, 3, H, Dh), 2, 0, 3, 1, 4)
        q, k, v = qkv[0], qkv[1], qkv[2]
        scale = Dh ** -0.5
        scores = torch.einsum("bhqd,bhkd->bhqk", q, k) * scale
        p = _softmax(scores, axis=-1)
        o = torch.einsum("bhqk,bhkd->bhqd", p, v)
        return (lambda x, *d: x.permute(*d))(o, 0, 2, 1, 3).reshape(B, S, D) @ wo

    def _B_ref(x, w1, b1, w2):
        h = torch.einsum("bsd,df->bsf", x, w1) + b1
        sp = torch.log1p(torch.exp(-torch.abs(h))) + torch.where(h > 0, h, torch.zeros_like(h))
        act = h * torch.tanh(sp)
        return torch.einsum("bsf,fd->bsd", act, w2)

    x = A_x
    x = x + _A_ref(_layernorm(x, axis=-1), A_wqkv, A_wo)
    x = x + _B_ref(_layernorm(x, axis=-1), B_w1, B_b1, B_w2)
    x = x + _A_ref(_layernorm(x, axis=-1), A_wqkv, A_wo)
    x = x + _B_ref(_layernorm(x, axis=-1), B_w1, B_b1, B_w2)
    return x
```

```python
import sys, math, struct

NAME = "interleave_layers__softmax_full_mha__dense_activation_mish__prompt"

KA_X, KA_WQKV, KA_WO, KA_BX, KA_W1, KA_B1, KA_W2, KA_OUT, KA_DBG, KA_WS = [8 * i for i in range(10)]

WS_Q = 0x000000
WS_K = 0x200000
WS_VT = 0x400000
WS_O = 0x600000
WS_X1 = 0x800000
WS_X2 = 0xA00000
WS_X3 = 0xC00000
WS_ACT = 0x1000000
WS_BYTES = 0x10000000

LOG2E = 1.4426950408889634


def f2u(f):
    return struct.unpack("<I", struct.pack("<f", f))[0]


class Kern:
    def __init__(self, name):
        self.name = name
        self.L = []
        self.maxv = 0
        self.nlab = 0

    def e(self, s):
        self.L.append("    " + s)

    def c(self, s):
        self.L.append("    ; " + s)

    def lab(self, l):
        self.L.append(l + ":")

    def newlab(self, p="L"):
        self.nlab += 1
        return f"{self.name}_{p}{self.nlab}"

    def text(self, nvgpr, nsgpr=96):
        nv = (nvgpr + 7) // 8 * 8
        out = [".text", f".globl {self.name}", ".p2align 8", f".type {self.name},@function", f"{self.name}:"]
        out += self.L
        out += [
            '.section .rodata,"a"',
            ".p2align 6",
            f".amdhsa_kernel {self.name}",
            f"  .amdhsa_next_free_vgpr {nv}",
            f"  .amdhsa_next_free_sgpr {nsgpr}",
            f"  .amdhsa_accum_offset {nv}",
            "  .amdhsa_group_segment_fixed_size 0",
            "  .amdhsa_kernarg_size 80",
            "  .amdhsa_user_sgpr_count 2",
            "  .amdhsa_user_sgpr_kernarg_segment_ptr 1",
            "  .amdhsa_system_sgpr_workgroup_id_x 1",
            ".end_amdhsa_kernel",
        ]
        return "\n".join(out)


class VAlloc:
    def __init__(self, start=1):
        self.n = start

    def get(self, cnt=1, align=1):
        self.n = (self.n + align - 1) // align * align
        r = self.n
        self.n += cnt
        return r


def vr(b, n):
    return f"v[{b}:{b + n - 1}]"


def sr(b, n):
    return f"s[{b}:{b + n - 1}]"


def make_srd(k, sd, sbase, off, nbytes):
    if off:
        k.e(f"s_add_u32 s{sd}, s{sbase}, 0x{off:x}")
        k.e(f"s_addc_u32 s{sd + 1}, s{sbase + 1}, 0")
    else:
        k.e(f"s_mov_b32 s{sd}, s{sbase}")
        k.e(f"s_mov_b32 s{sd + 1}, s{sbase + 1}")
    k.e(f"s_and_b32 s{sd + 1}, s{sd + 1}, 0xffff")
    k.e(f"s_mov_b32 s{sd + 2}, 0x{nbytes:x}")
    k.e(f"s_mov_b32 s{sd + 3}, 0x00020000")


def round_bf16(k, v, tmp):
    k.e(f"v_cvt_pk_bf16_f32 v{tmp}, v{v}, v{v}")
    k.e(f"v_and_b32 v{v}, 0xffff0000, v{tmp}")


def half_sum(k, v, tmp):
    k.e(f"v_mov_b32 v{tmp}, v{v}")
    k.e("s_nop 1")
    k.e(f"v_permlane32_swap_b32 v{v}, v{tmp}")
    k.e(f"v_add_f32 v{v}, v{v}, v{tmp}")


def gen_gemm_ln(name, kind, src):
    k = Kern(name)
    qkv = kind == "qkv"
    NSUB = 3 if qkv else 4
    NWG = 256 if qkv else 224
    WROW = 3072 if qkv else 3584
    WLROW = NSUB * 64
    A_BYTES = 16384
    W_BYTES = 64 * WLROW
    STAGE = A_BYTES + W_BYTES
    NST = 4
    NCH = 8
    EX = NST * STAGE
    LDS = EX + 4096
    NWD = W_BYTES // 1024 // 4
    NDMA = 4 + NWD

    S_WV, S_A, S_W, S_O, S_B = 3, 4, 8, 12, 16
    S_MT, S_NT, S_T0, S_T1, S_SA, S_SW = 20, 21, 22, 23, 24, 25
    S_P = 28

    va = VAlloc(1)
    vLane = va.get()
    vT0 = va.get(); vT1 = va.get(); vT2 = va.get(); vT3 = va.get()
    vAd = va.get(4)
    vWd = va.get(4)
    vAr = va.get(8)
    vWr = va.get(8)
    vOnes = va.get()
    vSum = va.get(); vSq = va.get(); vCs = va.get()
    vMean = va.get(); vRstd = va.get()
    vAf = va.get(8, 4)
    vWf = va.get(2 * NSUB * 4, 4)
    vAcc = va.get(NSUB * 16, 4)
    vE = va.get(48, 4)
    vBias = va.get(NSUB * 8, 4) if not qkv else None

    end = name + "_end"
    k.e(f"s_cmp_ge_u32 s2, {NWG}")
    k.e(f"s_cbranch_scc1 {end}")
    k.e(f"s_load_dwordx2 s[{S_P}:{S_P+1}], s[0:1], {KA_WS}")
    k.e(f"s_load_dwordx2 s[{S_P+2}:{S_P+3}], s[0:1], {KA_WQKV if qkv else KA_W1}")
    k.e(f"s_load_dwordx2 s[{S_P+4}:{S_P+5}], s[0:1], {KA_X}")
    k.e(f"s_load_dwordx2 s[{S_P+6}:{S_P+7}], s[0:1], {KA_B1}")
    k.e(f"v_and_b32 v{vLane}, 63, v0")
    k.e(f"v_lshrrev_b32 v{vT0}, 6, v0")
    k.e("s_nop 0")
    k.e(f"v_readfirstlane_b32 s{S_WV}, v{vT0}")
    k.e(f"s_and_b32 s{S_MT}, s2, 7")
    k.e(f"s_lshl_b32 s{S_MT}, s{S_MT}, 1")
    k.e(f"s_bfe_u32 s{S_T0}, s2, 0x10003")
    k.e(f"s_add_u32 s{S_MT}, s{S_MT}, s{S_T0}")
    k.e(f"s_lshr_b32 s{S_NT}, s2, 4")
    k.e("s_waitcnt lgkmcnt(0)")
    if src[0] == "arg":
        make_srd(k, S_A, S_P + 4, 0, 2048 * 512 * 2)
    else:
        make_srd(k, S_A, S_P, src[1], 2048 * 512 * 2)
    make_srd(k, S_W, S_P + 2, 0, 512 * WROW)
    make_srd(k, S_O, S_P, 0, WS_BYTES)
    if not qkv:
        make_srd(k, S_B, S_P + 6, 0, 1792 * 2)

    k.e(f"v_lshrrev_b32 v{vT0}, 3, v{vLane}")
    k.e(f"v_and_b32 v{vT1}, 7, v{vLane}")
    k.e(f"v_lshrrev_b32 v{vT2}, 4, v{vLane}")
    k.e(f"s_lshl_b32 s{S_T0}, s{S_MT}, 7")
    k.e(f"s_lshl_b32 s{S_T1}, s{S_WV}, 5")
    k.e(f"s_add_u32 s{S_T0}, s{S_T0}, s{S_T1}")
    for t in range(4):
        f_hi = 4 * (t & 1)
        k.e(f"v_or_b32 v{vT3}, {f_hi}, v{vT2}")
        k.e(f"v_xor_b32 v{vT3}, v{vT3}, v{vT1}")
        k.e(f"v_lshlrev_b32 v{vT3}, 4, v{vT3}")
        k.e(f"v_add_u32 v{vAd+t}, {8*t}, v{vT0}")
        k.e(f"v_add_u32 v{vAd+t}, s{S_T0}, v{vAd+t}")
        k.e(f"v_lshlrev_b32 v{vAd+t}, 10, v{vAd+t}")
        k.e(f"v_add_u32 v{vAd+t}, v{vAd+t}, v{vT3}")
    if qkv:
        k.e(f"s_lshl_b32 s{S_T0}, s{S_WV}, 4")
        k.e(f"s_lshl_b32 s{S_T1}, s{S_NT}, 6")
        for t in range(3):
            k.e(f"v_add_u32 v{vT0}, {64*t}, v{vLane}")
            k.e(f"v_mul_u32_u24 v{vT1}, 171, v{vT0}")
            k.e(f"v_lshrrev_b32 v{vT1}, 11, v{vT1}")
            k.e(f"v_mul_u32_u24 v{vT2}, 12, v{vT1}")
            k.e(f"v_sub_u32 v{vT2}, v{vT0}, v{vT2}")
            k.e(f"v_add_u32 v{vT1}, s{S_T0}, v{vT1}")
            k.e(f"v_mul_u32_u24 v{vWd+t}, 3072, v{vT1}")
            k.e(f"v_lshrrev_b32 v{vT3}, 2, v{vT2}")
            k.e(f"v_lshlrev_b32 v{vT3}, 10, v{vT3}")
            k.e(f"v_add_u32 v{vWd+t}, v{vWd+t}, v{vT3}")
            k.e(f"v_and_b32 v{vT3}, 3, v{vT2}")
            k.e(f"v_lshlrev_b32 v{vT3}, 4, v{vT3}")
            k.e(f"v_add_u32 v{vWd+t}, v{vWd+t}, v{vT3}")
            k.e(f"v_add_u32 v{vWd+t}, s{S_T1}, v{vWd+t}")
    else:
        k.e(f"s_lshl_b32 s{S_T0}, s{S_WV}, 4")
        k.e(f"s_lshl_b32 s{S_T1}, s{S_NT}, 8")
        k.e(f"v_lshrrev_b32 v{vT0}, 4, v{vLane}")
        k.e(f"v_bfe_u32 v{vT1}, v{vLane}, 2, 2")
        k.e(f"v_xor_b32 v{vT1}, v{vT1}, v{vT0}")
        k.e(f"v_lshlrev_b32 v{vT1}, 6, v{vT1}")
        k.e(f"v_and_b32 v{vT2}, 3, v{vLane}")
        k.e(f"v_lshlrev_b32 v{vT2}, 4, v{vT2}")
        k.e(f"v_add3_u32 v{vT1}, v{vT1}, v{vT2}, s{S_T1}")
        for t in range(4):
            k.e(f"v_add_u32 v{vT2}, {4*t}, v{vT0}")
            k.e(f"v_add_u32 v{vT2}, s{S_T0}, v{vT2}")
            k.e(f"v_mul_u32_u24 v{vWd+t}, {WROW}, v{vT2}")
            k.e(f"v_add_u32 v{vWd+t}, v{vWd+t}, v{vT1}")

    k.e(f"v_and_b32 v{vT0}, 31, v{vLane}")
    k.e(f"v_lshrrev_b32 v{vT1}, 5, v{vLane}")
    k.e(f"v_bfe_u32 v{vT2}, v{vLane}, 1, 3")
    k.e(f"s_lshl_b32 s{S_T0}, s{S_WV}, 12")
    for s in range(4):
        k.e(f"v_or_b32 v{vT3}, {2*s}, v{vT1}")
        k.e(f"v_xor_b32 v{vT3}, v{vT3}, v{vT2}")
        k.e(f"v_lshlrev_b32 v{vT3}, 4, v{vT3}")
        k.e(f"v_lshl_add_u32 v{vAr+s}, v{vT0}, 7, v{vT3}")
        k.e(f"v_add_u32 v{vAr+s}, s{S_T0}, v{vAr+s}")
        k.e(f"v_add_u32 v{vAr+4+s}, {2*STAGE}, v{vAr+s}")
    k.e(f"v_bfe_u32 v{vT0}, v{vLane}, 2, 2")
    k.e(f"v_lshrrev_b32 v{vT1}, 5, v{vLane}")
    k.e(f"v_lshl_add_u32 v{vT1}, v{vT1}, 3, v{vT0}")
    k.e(f"v_mul_u32_u24 v{vT1}, {WLROW}, v{vT1}")
    k.e(f"v_bfe_u32 v{vT2}, v{vLane}, 4, 1")
    k.e(f"v_lshl_add_u32 v{vT1}, v{vT2}, 5, v{vT1}")
    k.e(f"v_and_b32 v{vT2}, 3, v{vLane}")
    k.e(f"v_lshl_add_u32 v{vT1}, v{vT2}, 3, v{vT1}")
    k.e(f"v_add_u32 v{vT1}, {A_BYTES}, v{vT1}")
    for t in range(NSUB):
        if qkv:
            k.e(f"v_add_u32 v{vWr+t}, {64*t}, v{vT1}")
        else:
            k.e(f"v_xor_b32 v{vT2}, {t}, v{vT0}")
            k.e(f"v_lshl_add_u32 v{vWr+t}, v{vT2}, 6, v{vT1}")
        k.e(f"v_add_u32 v{vWr+4+t}, {2*STAGE}, v{vWr+t}")
    k.e(f"v_mov_b32 v{vOnes}, 0x3f803f80")
    k.e(f"v_mov_b32 v{vSum}, 0")
    k.e(f"v_mov_b32 v{vSq}, 0")
    k.e(f"v_mov_b32 v{vCs}, 0")
    for i in range(NSUB * 16):
        k.e(f"v_mov_b32 v{vAcc+i}, 0")

    if not qkv:
        k.e(f"v_lshrrev_b32 v{vT0}, 5, v{vLane}")
        k.e(f"v_lshlrev_b32 v{vT0}, 3, v{vT0}")
        k.e(f"s_lshl_b32 s{S_T0}, s{S_NT}, 8")
        k.e(f"v_add_u32 v{vT0}, s{S_T0}, v{vT0}")
        for t in range(NSUB):
            for g in range(4):
                k.e(f"buffer_load_dwordx2 {vr(vBias + (t*4+g)*2, 2)}, v{vT0}, {sr(S_B,4)}, 0 offen offset:{t*64+g*16}")
    NEXTRA = 0 if qkv else 16

    def dma(c):
        st = c % NST
        k.e(f"s_mov_b32 s{S_SA}, {c*128}")
        k.e(f"s_mov_b32 s{S_SW}, {c*64*WROW}")
        k.e(f"s_lshl_b32 s{S_T0}, s{S_WV}, 12")
        for t in range(4):
            k.e(f"s_add_u32 m0, s{S_T0}, {st*STAGE + t*1024}")
            k.e("s_nop 0")
            k.e(f"buffer_load_dwordx4 v{vAd+t}, {sr(S_A,4)}, s{S_SA} offen lds")
        k.e(f"s_mul_i32 s{S_T0}, s{S_WV}, {NWD*1024}")
        for t in range(NWD):
            k.e(f"s_add_u32 m0, s{S_T0}, {st*STAGE + A_BYTES + t*1024}")
            k.e("s_nop 0")
            k.e(f"buffer_load_dwordx4 v{vWd+t}, {sr(S_W,4)}, s{S_SW} offen lds")

    def reads(c, s, p):
        st = c % NST
        hi = 4 if st >= 2 else 0
        base = (st & 1) * STAGE
        k.e(f"ds_read_b128 {vr(vAf+4*p,4)}, v{vAr+hi+s} offset:{base}")
        for t in range(NSUB):
            o = base + s * 16 * WLROW
            wf = vWf + (p * NSUB + t) * 4
            k.e(f"ds_read_b64_tr_b16 {vr(wf,2)}, v{vWr+hi+t} offset:{o}")
            k.e(f"ds_read_b64_tr_b16 {vr(wf+2,2)}, v{vWr+hi+t} offset:{o + 4*WLROW}")

    lab_cs = {}

    def compute(p):
        af = vAf + 4 * p
        for t in range(NSUB):
            wf = vWf + (p * NSUB + t) * 4
            acc = vAcc + 16 * t
            if qkv and t == 2:
                k.e(f"v_mfma_f32_32x32x16_bf16 {vr(acc,16)}, {vr(af,4)}, {vr(wf,4)}, {vr(acc,16)}")
            else:
                k.e(f"v_mfma_f32_32x32x16_bf16 {vr(acc,16)}, {vr(wf,4)}, {vr(af,4)}, {vr(acc,16)}")
            if t == 0:
                for j in range(4):
                    k.e(f"v_dot2c_f32_bf16 v{vSum}, v{af+j}, v{vOnes}")
            if t == 1:
                for j in range(4):
                    k.e(f"v_dot2c_f32_bf16 v{vSq}, v{af+j}, v{af+j}")
        done = k.newlab("cs")
        for t in range(NSUB):
            nxt = k.newlab("cs")
            k.e(f"s_cmp_lg_u32 s{S_WV}, {t}")
            k.e(f"s_cbranch_scc1 {nxt}")
            wf = vWf + (p * NSUB + t) * 4
            for j in range(4):
                k.e(f"v_dot2c_f32_bf16 v{vCs}, v{wf+j}, v{vOnes}")
            k.e(f"s_branch {done}")
            k.lab(nxt)
        k.lab(done)

    for c in range(NST):
        dma(c)
    k.e(f"s_waitcnt vmcnt({(NST-1)*NDMA})")
    k.e("s_barrier")
    reads(0, 0, 0)
    step = 0
    for c in range(NCH):
        for s in range(4):
            p = step & 1
            if s < 3:
                reads(c, s + 1, p ^ 1)
                k.e(f"s_waitcnt lgkmcnt({1 + 2*NSUB})")
            else:
                if c + 1 < NCH:
                    outstanding = min(NCH - 1, c + NST - 1) - (c + 1)
                    k.e(f"s_waitcnt vmcnt({outstanding*NDMA}) lgkmcnt(0)")
                    k.e("s_barrier")
                    if c + NST < NCH:
                        dma(c + NST)
                    reads(c + 1, 0, p ^ 1)
                else:
                    k.e("s_waitcnt lgkmcnt(0)")
            compute(p)
            step += 1

    k.c("epilogue: stats")
    half_sum(k, vSum, vT0)
    half_sum(k, vSq, vT0)
    half_sum(k, vCs, vT0)
    k.e(f"v_mul_f32 v{vMean}, {f2u(1.0/512):#x}, v{vSum}")
    k.e(f"v_mul_f32 v{vT0}, {f2u(1.0/512):#x}, v{vSq}")
    k.e(f"v_fma_f32 v{vT0}, -v{vMean}, v{vMean}, v{vT0}")
    k.e(f"v_max_f32 v{vT0}, 0, v{vT0}")
    round_bf16(k, vT0, vT1)
    k.e(f"v_add_f32 v{vT0}, {f2u(1e-5):#x}, v{vT0}")
    round_bf16(k, vT0, vT1)
    k.e(f"v_sqrt_f32 v{vT0}, v{vT0}")
    k.e("s_nop 0")
    round_bf16(k, vT0, vT1)
    k.e(f"v_rcp_f32 v{vRstd}, v{vT0}")
    round_bf16(k, vMean, vT1)
    k.e(f"v_and_b32 v{vT0}, 31, v{vLane}")
    k.e(f"v_lshlrev_b32 v{vT0}, 2, v{vT0}")
    k.e(f"s_lshl_b32 s{S_T0}, s{S_WV}, 7")
    k.e(f"v_add_u32 v{vT1}, s{S_T0}, v{vT0}")
    k.e(f"v_add_u32 v{vT1}, {EX}, v{vT1}")
    k.e(f"ds_write_b32 v{vT1}, v{vCs}")
    if qkv:
        k.e(f"s_lshl_b32 s{S_T0}, s{S_WV}, 8")
        k.e(f"v_add_u32 v{vT2}, s{S_T0}, v{vT0}")
        k.e(f"v_add_u32 v{vT2}, {EX + 1024}, v{vT2}")
        k.e(f"ds_write_b32 v{vT2}, v{vMean}")
        k.e(f"ds_write_b32 v{vT2}, v{vRstd} offset:128")
    k.e("s_waitcnt lgkmcnt(0)")
    k.e("s_barrier")
    k.e(f"v_lshrrev_b32 v{vT3}, 5, v{vLane}")
    k.e(f"v_lshlrev_b32 v{vT3}, 4, v{vT3}")
    k.e(f"v_add_u32 v{vT3}, {EX}, v{vT3}")

    if qkv:
        vO = vE + 40
        vO2 = vE + 41
        k.e(f"s_lshl_b32 s{S_T0}, s{S_MT}, 2")
        k.e(f"s_add_u32 s{S_T0}, s{S_T0}, s{S_WV}")
        k.e(f"s_lshl_b32 s{S_T1}, s{S_T0}, 10")
        k.e(f"s_lshl_b32 s{S_SA}, s{S_NT}, 17")
        k.e(f"s_add_u32 s{S_T1}, s{S_T1}, s{S_SA}")
        k.e(f"v_lshlrev_b32 v{vO}, 4, v{vLane}")
        k.e(f"v_add_u32 v{vO}, s{S_T1}, v{vO}")
        cq = 0.25 * LOG2E
        for t in range(2):
            acc = vAcc + 16 * t
            for g in range(4):
                k.e(f"ds_read_b128 {vr(vE+4*g,4)}, v{vT3} offset:{t*128 + g*32}")
            if t == 0:
                k.e(f"v_mul_f32 v{vT0}, {f2u(cq):#x}, v{vRstd}")
            else:
                k.e(f"v_mov_b32 v{vT0}, v{vRstd}")
            k.e("s_waitcnt lgkmcnt(0)")
            for r in range(16):
                k.e(f"v_fma_f32 v{acc+r}, -v{vMean}, v{vE+r}, v{acc+r}")
                k.e(f"v_mul_f32 v{acc+r}, v{acc+r}, v{vT0}")
            for gp in range(2):
                pk = vE + 16 + 4 * gp
                for j in range(4):
                    k.e(f"v_cvt_pk_bf16_f32 v{pk+j}, v{acc+8*gp+2*j}, v{acc+8*gp+2*j+1}")
                k.e("s_nop 1")
                k.e(f"v_permlane32_swap_b32 v{pk}, v{pk+2}")
                k.e(f"v_permlane32_swap_b32 v{pk+1}, v{pk+3}")
                k.e(f"s_mov_b32 s{S_SW}, {(WS_Q if t == 0 else WS_K) + gp*65536}")
                k.e(f"buffer_store_dwordx4 {vr(pk,4)}, v{vO}, {sr(S_O,4)}, s{S_SW} offen")
        acc = vAcc + 32
        k.e(f"v_and_b32 v{vT0}, 31, v{vLane}")
        k.e(f"v_lshlrev_b32 v{vT0}, 2, v{vT0}")
        k.e(f"v_add_u32 v{vT0}, {EX}, v{vT0}")
        k.e(f"ds_read_b32 v{vT1}, v{vT0} offset:256")
        k.e(f"s_lshl_b32 s{S_SW}, s{S_WV}, 8")
        k.e(f"v_add_u32 v{vT2}, s{S_SW}, v{vT3}")
        for g in range(4):
            k.e(f"ds_read_b128 {vr(vE+4*g,4)}, v{vT2} offset:{1024 + g*32}")
            k.e(f"ds_read_b128 {vr(vE+16+4*g,4)}, v{vT2} offset:{1024 + 128 + g*32}")
        k.e(f"v_bfe_u32 v{vO2}, v{vLane}, 4, 1")
        k.e(f"v_lshlrev_b32 v{vO2}, 16, v{vO2}")
        k.e(f"v_lshrrev_b32 v{vT0}, 5, v{vLane}")
        k.e(f"v_lshl_add_u32 v{vO2}, v{vT0}, 8, v{vO2}")
        k.e(f"v_and_b32 v{vT0}, 15, v{vLane}")
        k.e(f"v_lshl_add_u32 v{vO2}, v{vT0}, 4, v{vO2}")
        k.e(f"v_add_u32 v{vO2}, s{S_T1}, v{vO2}")
        k.e("s_waitcnt lgkmcnt(0)")
        for r in range(16):
            k.e(f"v_fma_f32 v{acc+r}, -v{vE+r}, v{vT1}, v{acc+r}")
            k.e(f"v_mul_f32 v{acc+r}, v{acc+r}, v{vE+16+r}")
        for G in range(2):
            pk = vE + 32 + 4 * G
            for j in range(4):
                k.e(f"v_cvt_pk_bf16_f32 v{pk+j}, v{acc+8*G+2*j}, v{acc+8*G+2*j+1}")
            k.e(f"s_mov_b32 s{S_SW}, {WS_VT + G*512}")
            k.e(f"buffer_store_dwordx4 {vr(pk,4)}, v{vO2}, {sr(S_O,4)}, s{S_SW} offen")
    else:
        vO = vE + 40
        k.e(f"s_lshl_b32 s{S_T0}, s{S_MT}, 7")
        k.e(f"s_lshl_b32 s{S_T1}, s{S_WV}, 5")
        k.e(f"s_add_u32 s{S_T0}, s{S_T0}, s{S_T1}")
        k.e(f"v_and_b32 v{vO}, 31, v{vLane}")
        k.e(f"v_add_u32 v{vO}, s{S_T0}, v{vO}")
        k.e(f"v_mul_u32_u24 v{vO}, 3584, v{vO}")
        k.e(f"v_lshrrev_b32 v{vT0}, 5, v{vLane}")
        k.e(f"v_lshl_add_u32 v{vO}, v{vT0}, 4, v{vO}")
        k.e(f"s_lshl_b32 s{S_T0}, s{S_NT}, 8")
        k.e(f"v_add_u32 v{vO}, s{S_T0}, v{vO}")
        k.e(f"s_mov_b32 s{S_SW}, {WS_ACT}")
        for t in range(NSUB):
            acc = vAcc + 16 * t
            for g in range(4):
                k.e(f"ds_read_b128 {vr(vE+4*g,4)}, v{vT3} offset:{t*128 + g*32}")
            k.e("s_waitcnt lgkmcnt(0)")
            for r in range(16):
                a = acc + r
                bsrc = vBias + (t * 4 + (r >> 2)) * 2 + ((r & 3) >> 1)
                k.e(f"v_fma_f32 v{a}, -v{vMean}, v{vE+r}, v{a}")
                k.e(f"v_mul_f32 v{a}, v{a}, v{vRstd}")
                round_bf16(k, a, vT0)
                if r & 1:
                    k.e(f"v_and_b32 v{vT1}, 0xffff0000, v{bsrc}")
                else:
                    k.e(f"v_lshlrev_b32 v{vT1}, 16, v{bsrc}")
                k.e(f"v_add_f32 v{a}, v{a}, v{vT1}")
                round_bf16(k, a, vT0)
                k.e(f"v_min_f32 v{vT0}, {f2u(20.0):#x}, v{a}")
                k.e(f"v_mul_f32 v{vT0}, {f2u(LOG2E):#x}, v{vT0}")
                k.e(f"v_exp_f32 v{vT0}, v{vT0}")
                k.e("s_nop 0")
                k.e(f"v_add_f32 v{vT1}, 2.0, v{vT0}")
                k.e(f"v_mul_f32 v{vT0}, v{vT0}, v{vT1}")
                k.e(f"v_add_f32 v{vT1}, 2.0, v{vT0}")
                k.e(f"v_rcp_f32 v{vT1}, v{vT1}")
                k.e(f"v_mul_f32 v{a}, v{a}, v{vT0}")
                k.e(f"v_mul_f32 v{a}, v{a}, v{vT1}")
            for gp in range(2):
                pk = vE + 16 + 4 * gp
                for j in range(4):
                    k.e(f"v_cvt_pk_bf16_f32 v{pk+j}, v{acc+8*gp+2*j}, v{acc+8*gp+2*j+1}")
                k.e("s_nop 1")
                k.e(f"v_permlane32_swap_b32 v{pk}, v{pk+2}")
                k.e(f"v_permlane32_swap_b32 v{pk+1}, v{pk+3}")
                k.e(f"buffer_store_dwordx4 {vr(pk,4)}, v{vO}, {sr(S_O,4)}, s{S_SW} offen offset:{t*64+gp*32}")
    k.lab(end)
    k.e("s_endpgm")
    return k, va.n, NWG, LDS


def gen_gemm_res(name, kind, res, dst):
    k = Kern(name)
    wo = kind == "wo"
    KT = 512 if wo else 1792
    AROW = 1024 if wo else 3584
    A_OFF = WS_O if wo else WS_ACT
    NCH = KT // 64
    NST = 8
    STAGE = 16384
    LDS = NST * STAGE
    NDMA = 4
    NWG = 256

    S_WV, S_A, S_W, S_O, S_R = 3, 4, 8, 12, 16
    S_MT, S_NT, S_T0, S_T1, S_SA, S_SW = 20, 21, 22, 23, 24, 25
    S_P = 28

    va = VAlloc(1)
    vLane = va.get()
    vT0 = va.get(); vT1 = va.get(); vT2 = va.get(); vT3 = va.get()
    vAd = va.get(2); vWd = va.get(2)
    vAr = va.get(8)
    vWr = va.get(2)
    vAf = va.get(8, 4); vWf = va.get(8, 4)
    vAcc = va.get(16, 4)
    vRes = va.get(8, 4)
    vPk = va.get(8, 4)
    vO = va.get()

    end = name + "_end"
    k.e(f"s_cmp_ge_u32 s2, {NWG}")
    k.e(f"s_cbranch_scc1 {end}")
    k.e(f"s_load_dwordx2 s[{S_P}:{S_P+1}], s[0:1], {KA_WS}")
    k.e(f"s_load_dwordx2 s[{S_P+2}:{S_P+3}], s[0:1], {KA_WO if wo else KA_W2}")
    k.e(f"s_load_dwordx2 s[{S_P+4}:{S_P+5}], s[0:1], {KA_X}")
    k.e(f"s_load_dwordx2 s[{S_P+6}:{S_P+7}], s[0:1], {KA_OUT}")
    k.e(f"v_and_b32 v{vLane}, 63, v0")
    k.e(f"v_lshrrev_b32 v{vT0}, 6, v0")
    k.e("s_nop 0")
    k.e(f"v_readfirstlane_b32 s{S_WV}, v{vT0}")
    k.e(f"s_and_b32 s{S_MT}, s2, 7")
    k.e(f"s_lshl_b32 s{S_MT}, s{S_MT}, 2")
    k.e(f"s_bfe_u32 s{S_T0}, s2, 0x20003")
    k.e(f"s_add_u32 s{S_MT}, s{S_MT}, s{S_T0}")
    k.e(f"s_lshr_b32 s{S_NT}, s2, 5")
    k.e("s_waitcnt lgkmcnt(0)")
    make_srd(k, S_A, S_P, A_OFF, 2048 * AROW)
    make_srd(k, S_W, S_P + 2, 0, KT * 1024)
    if dst[0] == "ws":
        make_srd(k, S_O, S_P, dst[1], 2048 * 1024)
    else:
        make_srd(k, S_O, S_P + 6, 0, 2048 * 1024)
    if res[0] == "ws":
        make_srd(k, S_R, S_P, res[1], 2048 * 1024)
    else:
        make_srd(k, S_R, S_P + 4, 0, 2048 * 1024)

    k.e(f"v_lshrrev_b32 v{vT0}, 3, v{vLane}")
    k.e(f"v_and_b32 v{vT1}, 7, v{vLane}")
    k.e(f"v_lshrrev_b32 v{vT2}, 4, v{vLane}")
    k.e(f"s_lshl_b32 s{S_T0}, s{S_MT}, 6")
    k.e(f"s_lshl_b32 s{S_T1}, s{S_WV}, 4")
    k.e(f"s_add_u32 s{S_T0}, s{S_T0}, s{S_T1}")
    for t in range(2):
        k.e(f"v_or_b32 v{vT3}, {4*t}, v{vT2}")
        k.e(f"v_xor_b32 v{vT3}, v{vT3}, v{vT1}")
        k.e(f"v_lshlrev_b32 v{vT3}, 4, v{vT3}")
        k.e(f"v_add_u32 v{vAd+t}, {8*t}, v{vT0}")
        k.e(f"v_add_u32 v{vAd+t}, s{S_T0}, v{vAd+t}")
        k.e(f"v_mul_u32_u24 v{vAd+t}, {AROW}, v{vAd+t}")
        k.e(f"v_add_u32 v{vAd+t}, v{vAd+t}, v{vT3}")
    k.e(f"v_bfe_u32 v{vT1}, v{vLane}, 2, 1")
    k.e(f"v_bfe_u32 v{vT2}, v{vLane}, 4, 1")
    k.e(f"v_xor_b32 v{vT1}, v{vT1}, v{vT2}")
    k.e(f"v_lshlrev_b32 v{vT1}, 6, v{vT1}")
    k.e(f"v_and_b32 v{vT2}, 3, v{vLane}")
    k.e(f"v_lshl_add_u32 v{vT1}, v{vT2}, 4, v{vT1}")
    k.e(f"s_lshl_b32 s{S_T0}, s{S_NT}, 7")
    k.e(f"v_add_u32 v{vT1}, s{S_T0}, v{vT1}")
    for t in range(2):
        k.e(f"v_add_u32 v{vWd+t}, {8*t}, v{vT0}")
        k.e(f"v_add_u32 v{vWd+t}, s{S_T1}, v{vWd+t}")
        k.e(f"v_lshl_add_u32 v{vWd+t}, v{vWd+t}, 10, v{vT1}")
    k.e(f"s_and_b32 s{S_T0}, s{S_WV}, 1")
    k.e(f"s_lshl_b32 s{S_T0}, s{S_T0}, 12")
    k.e(f"v_and_b32 v{vT0}, 31, v{vLane}")
    k.e(f"v_lshrrev_b32 v{vT1}, 5, v{vLane}")
    k.e(f"v_bfe_u32 v{vT2}, v{vLane}, 1, 3")
    for s in range(4):
        k.e(f"v_or_b32 v{vT3}, {2*s}, v{vT1}")
        k.e(f"v_xor_b32 v{vT3}, v{vT3}, v{vT2}")
        k.e(f"v_lshlrev_b32 v{vT3}, 4, v{vT3}")
        k.e(f"v_lshl_add_u32 v{vAr+s}, v{vT0}, 7, v{vT3}")
        k.e(f"v_add_u32 v{vAr+s}, s{S_T0}, v{vAr+s}")
        k.e(f"v_add_u32 v{vAr+4+s}, {4*STAGE}, v{vAr+s}")
    k.e(f"s_lshr_b32 s{S_T0}, s{S_WV}, 1")
    k.e(f"v_bfe_u32 v{vT0}, v{vLane}, 2, 2")
    k.e(f"v_lshrrev_b32 v{vT1}, 5, v{vLane}")
    k.e(f"v_lshl_add_u32 v{vT1}, v{vT1}, 3, v{vT0}")
    k.e(f"v_lshlrev_b32 v{vT1}, 7, v{vT1}")
    k.e(f"v_lshrrev_b32 v{vT2}, 1, v{vT0}")
    k.e(f"v_xor_b32 v{vT2}, s{S_T0}, v{vT2}")
    k.e(f"v_lshl_add_u32 v{vT1}, v{vT2}, 6, v{vT1}")
    k.e(f"v_bfe_u32 v{vT2}, v{vLane}, 4, 1")
    k.e(f"v_lshl_add_u32 v{vT1}, v{vT2}, 5, v{vT1}")
    k.e(f"v_and_b32 v{vT2}, 3, v{vLane}")
    k.e(f"v_lshl_add_u32 v{vT1}, v{vT2}, 3, v{vT1}")
    k.e(f"v_add_u32 v{vWr}, 8192, v{vT1}")
    k.e(f"v_add_u32 v{vWr+1}, {4*STAGE}, v{vWr}")
    for i in range(16):
        k.e(f"v_mov_b32 v{vAcc+i}, 0")
    k.e(f"s_lshl_b32 s{S_T0}, s{S_MT}, 1")
    k.e(f"s_and_b32 s{S_T1}, s{S_WV}, 1")
    k.e(f"s_add_u32 s{S_T0}, s{S_T0}, s{S_T1}")
    k.e(f"s_lshl_b32 s{S_T0}, s{S_T0}, 15")
    k.e(f"s_lshl_b32 s{S_T1}, s{S_NT}, 7")
    k.e(f"s_add_u32 s{S_T0}, s{S_T0}, s{S_T1}")
    k.e(f"s_lshr_b32 s{S_T1}, s{S_WV}, 1")
    k.e(f"s_lshl_b32 s{S_T1}, s{S_T1}, 6")
    k.e(f"s_add_u32 s{S_T0}, s{S_T0}, s{S_T1}")
    k.e(f"v_and_b32 v{vO}, 31, v{vLane}")
    k.e(f"v_lshlrev_b32 v{vO}, 10, v{vO}")
    k.e(f"v_lshrrev_b32 v{vT0}, 5, v{vLane}")
    k.e(f"v_lshl_add_u32 v{vO}, v{vT0}, 4, v{vO}")
    k.e(f"v_add_u32 v{vO}, s{S_T0}, v{vO}")
    for gp in range(2):
        k.e(f"buffer_load_dwordx4 {vr(vRes+4*gp,4)}, v{vO}, {sr(S_R,4)}, 0 offen offset:{gp*32}")

    def dma(c):
        st = c % NST
        k.e(f"s_mov_b32 s{S_SA}, {c*128}")
        k.e(f"s_mov_b32 s{S_SW}, {c*64*1024}")
        k.e(f"s_lshl_b32 s{S_T0}, s{S_WV}, 11")
        for t in range(2):
            k.e(f"s_add_u32 m0, s{S_T0}, {st*STAGE + t*1024}")
            k.e("s_nop 0")
            k.e(f"buffer_load_dwordx4 v{vAd+t}, {sr(S_A,4)}, s{S_SA} offen lds")
        for t in range(2):
            k.e(f"s_add_u32 m0, s{S_T0}, {st*STAGE + 8192 + t*1024}")
            k.e("s_nop 0")
            k.e(f"buffer_load_dwordx4 v{vWd+t}, {sr(S_W,4)}, s{S_SW} offen lds")

    def reads(c, s, p):
        st = c % NST
        hi = 1 if st >= 4 else 0
        base = (st & 3) * STAGE
        k.e(f"ds_read_b128 {vr(vAf+4*p,4)}, v{vAr+4*hi+s} offset:{base}")
        o = base + s * 16 * 128
        k.e(f"ds_read_b64_tr_b16 {vr(vWf+4*p,2)}, v{vWr+hi} offset:{o}")
        k.e(f"ds_read_b64_tr_b16 {vr(vWf+4*p+2,2)}, v{vWr+hi} offset:{o+512}")

    npre = min(NST, NCH)
    for c in range(npre):
        dma(c)
    k.e(f"s_waitcnt vmcnt({(npre-1)*NDMA})")
    k.e("s_barrier")
    reads(0, 0, 0)
    step = 0
    for c in range(NCH):
        for s in range(4):
            p = step & 1
            if s < 3:
                reads(c, s + 1, p ^ 1)
                k.e("s_waitcnt lgkmcnt(3)")
            else:
                if c + 1 < NCH:
                    outstanding = min(NCH - 1, c + NST - 1) - (c + 1)
                    k.e(f"s_waitcnt vmcnt({outstanding*NDMA}) lgkmcnt(0)")
                    k.e("s_barrier")
                    if c + NST < NCH:
                        dma(c + NST)
                    reads(c + 1, 0, p ^ 1)
                else:
                    k.e("s_waitcnt lgkmcnt(0)")
            k.e(f"v_mfma_f32_32x32x16_bf16 {vr(vAcc,16)}, {vr(vWf+4*p,4)}, {vr(vAf+4*p,4)}, {vr(vAcc,16)}")
            step += 1
    k.e("s_nop 15")
    k.e("s_nop 3")
    for gp in range(2):
        pk = vPk + 4 * gp
        for j in range(4):
            k.e(f"v_cvt_pk_bf16_f32 v{pk+j}, v{vAcc+8*gp+2*j}, v{vAcc+8*gp+2*j+1}")
        k.e("s_nop 1")
        k.e(f"v_permlane32_swap_b32 v{pk}, v{pk+2}")
        k.e(f"v_permlane32_swap_b32 v{pk+1}, v{pk+3}")
    for gp in range(2):
        for j in range(4):
            a = vPk + 4 * gp + j
            b = vRes + 4 * gp + j
            k.e(f"v_lshlrev_b32 v{vT0}, 16, v{a}")
            k.e(f"v_lshlrev_b32 v{vT1}, 16, v{b}")
            k.e(f"v_add_f32 v{vT0}, v{vT0}, v{vT1}")
            k.e(f"v_and_b32 v{vT2}, 0xffff0000, v{a}")
            k.e(f"v_and_b32 v{vT3}, 0xffff0000, v{b}")
            k.e(f"v_add_f32 v{vT2}, v{vT2}, v{vT3}")
            k.e(f"v_cvt_pk_bf16_f32 v{a}, v{vT0}, v{vT2}")
        k.e(f"buffer_store_dwordx4 {vr(vPk+4*gp,4)}, v{vO}, {sr(S_O,4)}, 0 offen offset:{gp*32}")
    k.lab(end)
    k.e("s_endpgm")
    return k, va.n, NWG, LDS


def gen_attn(name):
    k = Kern(name)
    NWG = 256
    LDS = 131072
    S_WV, S_WS = 3, 4
    S_HD, S_QB, S_T0, S_T1, S_SO, S_I = 20, 21, 22, 23, 24, 25
    S_EXM = 26
    S_P = 28

    va = VAlloc(1)
    vLane = va.get()
    vT0 = va.get(); vT1 = va.get(); vT2 = va.get(); vT3 = va.get()
    vDm = va.get()
    vKa = va.get(); vVa = va.get()
    vO = va.get()
    vQ = va.get(8, 4)
    vKf = va.get(8, 4)
    vVf = va.get(16, 4)
    vS = va.get(64, 4)
    vP = va.get(16, 4)
    vOa = va.get(32, 4)
    vC = va.get(32, 4)
    vPk = va.get(8, 4)

    def S(par, qt):
        return vS + (par * 2 + qt) * 16

    end = name + "_end"
    k.e(f"s_cmp_ge_u32 s2, {NWG}")
    k.e(f"s_cbranch_scc1 {end}")
    k.e(f"s_load_dwordx2 s[{S_P}:{S_P+1}], s[0:1], {KA_WS}")
    k.e(f"v_and_b32 v{vLane}, 63, v0")
    k.e(f"v_lshrrev_b32 v{vT0}, 6, v0")
    k.e("s_nop 0")
    k.e(f"v_readfirstlane_b32 s{S_WV}, v{vT0}")
    k.e(f"s_and_b32 s{S_HD}, s2, 31")
    k.e(f"s_lshr_b32 s{S_QB}, s2, 5")
    k.e(f"s_mov_b32 s{S_EXM}, 0x0000ffff")
    k.e(f"s_mov_b32 s{S_EXM+1}, 0x0000ffff")
    k.e("s_waitcnt lgkmcnt(0)")
    make_srd(k, S_WS, S_P, 0, WS_BYTES)
    k.e(f"v_lshlrev_b32 v{vDm}, 4, v{vLane}")
    k.e(f"s_lshl_b32 s{S_T0}, s{S_HD}, 16")
    k.e(f"s_lshl_b32 s{S_T1}, s{S_QB}, 13")
    k.e(f"s_add_u32 s{S_T1}, s{S_T1}, s{S_T0}")
    k.e(f"s_lshl_b32 s{S_SO}, s{S_WV}, 11")
    k.e(f"s_add_u32 s{S_SO}, s{S_SO}, s{S_T1}")
    k.e(f"s_add_u32 s{S_SO}, s{S_SO}, {WS_Q}")
    for qt in range(2):
        k.e(f"buffer_load_dwordx4 {vr(vQ+4*qt,4)}, v{vDm}, {sr(S_WS,4)}, s{S_SO} offen offset:{qt*1024}")
    k.e(f"s_lshl_b32 s{S_T1}, s{S_WV}, 11")
    k.e(f"s_add_u32 s{S_SO}, s{S_T0}, s{S_T1}")
    for c in range(8):
        for which in range(2):
            for t in range(2):
                k.e(f"s_add_u32 m0, s{S_T1}, {which*65536 + c*8192 + t*1024}")
                k.e(f"s_add_u32 s{S_I}, s{S_SO}, {(WS_K if which == 0 else WS_VT) + c*8192 + t*1024}")
                k.e(f"buffer_load_dwordx4 v{vDm}, {sr(S_WS,4)}, s{S_I} offen lds")
    k.e(f"v_mov_b32 v{vKa}, v{vDm}")
    k.e(f"v_lshrrev_b32 v{vT0}, 5, v{vLane}")
    k.e(f"v_lshlrev_b32 v{vT0}, 8, v{vT0}")
    k.e(f"v_and_b32 v{vT1}, 15, v{vLane}")
    k.e(f"v_lshl_add_u32 v{vVa}, v{vT1}, 4, v{vT0}")
    k.e(f"v_add_u32 v{vVa}, 65536, v{vVa}")
    k.e(f"v_and_b32 v{vT0}, 27, v{vLane}")
    k.e(f"v_cmp_eq_u32 vcc, 16, v{vT0}")
    k.e(f"v_mov_b32 v{vT1}, 0x3f803f80")
    k.e("s_nop 1")
    k.e(f"v_cndmask_b32 v{vT2}, 0, v{vT1}, vcc")
    for i in range(16):
        k.e(f"v_mov_b32 v{vVf+i}, v{vT2}")
    for i in range(32):
        k.e(f"v_mov_b32 v{vOa+i}, 0")
        k.e(f"v_mov_b32 v{vC+i}, 0")
    k.e(f"s_lshl_b32 s{S_T0}, s{S_QB}, 2")
    k.e(f"s_add_u32 s{S_T0}, s{S_T0}, s{S_WV}")
    k.e(f"s_lshl_b32 s{S_T0}, s{S_T0}, 16")
    k.e(f"s_lshl_b32 s{S_T1}, s{S_HD}, 5")
    k.e(f"s_add_u32 s{S_T0}, s{S_T0}, s{S_T1}")
    k.e(f"s_add_u32 s{S_T0}, s{S_T0}, {WS_O}")
    k.e(f"v_and_b32 v{vO}, 31, v{vLane}")
    k.e(f"v_lshlrev_b32 v{vO}, 10, v{vO}")
    k.e(f"v_lshrrev_b32 v{vT0}, 5, v{vLane}")
    k.e(f"v_lshl_add_u32 v{vO}, v{vT0}, 4, v{vO}")
    k.e(f"v_add_u32 v{vO}, s{S_T0}, v{vO}")

    def rdK(par, off):
        k.e(f"ds_read_b128 {vr(vKf+4*par,4)}, v{vKa} offset:{off}")

    def rdV(par, off):
        k.e(f"s_mov_b64 exec, s[{S_EXM}:{S_EXM+1}]")
        k.e(f"ds_read_b128 {vr(vVf+8*par,4)}, v{vVa} offset:{off}")
        k.e(f"ds_read_b128 {vr(vVf+8*par+4,4)}, v{vVa} offset:{off+512}")
        k.e("s_mov_b64 exec, -1")

    def mS(par, qt, kpar):
        k.e(f"v_mfma_f32_32x32x16_bf16 {vr(S(par,qt),16)}, {vr(vKf+4*kpar,4)}, {vr(vQ+4*qt,4)}, {vr(vC+16*qt,16)}")

    def mPV(qt, vpar, G):
        k.e(f"v_mfma_f32_32x32x16_bf16 {vr(vOa+16*qt,16)}, {vr(vVf+8*vpar+4*G,4)}, {vr(vP+8*qt+4*G,4)}, {vr(vOa+16*qt,16)}")

    def hb(par, qt, q):
        s = S(par, qt) + 4 * q
        for i in range(4):
            k.e(f"v_exp_f32 v{s+i}, v{s+i}")
        for i in range(2):
            k.e(f"v_cvt_pk_bf16_f32 v{vP+8*qt+2*q+i}, v{s+2*i}, v{s+2*i+1}")

    def tile(p, koff2, voff1, first, last_k, last_v):
        if koff2 is not None:
            rdK(p, koff2)
        hb(p, 0, 0)
        if not first:
            mPV(1, p ^ 1, 1)
        nv = 0
        if voff1 is not None:
            rdV(p ^ 1, voff1)
            nv = 2
        hb(p, 0, 1)
        if not last_k:
            k.e(f"s_waitcnt lgkmcnt({(1 if koff2 is not None else 0) + nv})")
            mS(p ^ 1, 0, p ^ 1)
        else:
            k.e(f"s_waitcnt lgkmcnt({nv})")
        hb(p, 0, 2)
        mPV(0, p, 0)
        hb(p, 0, 3)
        if not last_k:
            mS(p ^ 1, 1, p ^ 1)
        hb(p, 1, 0)
        mPV(0, p, 1)
        hb(p, 1, 1)
        hb(p, 1, 2)
        mPV(1, p, 0)
        hb(p, 1, 3)

    def main_pass(with_waits):
        if with_waits:
            k.e(f"s_waitcnt vmcnt({6*4})")
            k.e("s_barrier")
        rdK(0, 0)
        rdK(1, 1024)
        rdV(0, 0)
        k.e("s_waitcnt lgkmcnt(3)")
        mS(0, 0, 0)
        mS(0, 1, 0)
        k.e("s_nop 7")
        k.e("s_nop 3")
        for t in range(64):
            if with_waits and t % 8 == 0 and t > 0 and t // 8 + 1 < 8:
                cc = t // 8 + 1
                k.e(f"s_waitcnt vmcnt({(7-cc)*4})")
                k.e("s_barrier")
            tile(t & 1,
                 (t + 2) * 1024 if t + 2 < 64 else None,
                 (t + 1) * 1024 if t + 1 < 64 else None,
                 t == 0, t == 63, t == 63)
        k.e("s_nop 1")
        mPV(1, 1, 1)
        k.e("s_nop 15")
        k.e("s_nop 3")

    main_pass(True)
    fin = name + "_fin"
    k.e(f"v_mov_b32 v{vT0}, {f2u(2.0**-60):#x}")
    k.e(f"v_mov_b32 v{vT1}, {f2u(2.0**60):#x}")
    k.e(f"v_cmp_ge_f32 vcc, v{vOa+8}, v{vT0}")
    k.e(f"v_cmp_le_f32 s[{S_T0}:{S_T1}], v{vOa+8}, v{vT1}")
    k.e("s_nop 1")
    k.e(f"s_and_b64 vcc, vcc, s[{S_T0}:{S_T1}]")
    k.e(f"v_cmp_ge_f32 s[{S_T0}:{S_T1}], v{vOa+24}, v{vT0}")
    k.e("s_nop 1")
    k.e(f"s_and_b64 vcc, vcc, s[{S_T0}:{S_T1}]")
    k.e(f"v_cmp_le_f32 s[{S_T0}:{S_T1}], v{vOa+24}, v{vT1}")
    k.e("s_nop 1")
    k.e(f"s_and_b64 vcc, vcc, s[{S_T0}:{S_T1}]")
    k.e("s_cmp_eq_u64 vcc, -1")
    k.e(f"s_cbranch_scc1 {fin}")
    k.c("fallback: exact row max")
    k.e(f"v_mov_b32 v{vT0}, 0xff800000")
    k.e(f"v_mov_b32 v{vT1}, 0xff800000")
    k.e(f"v_mov_b32 v{vT2}, v{vKa}")
    k.e(f"s_mov_b32 s{S_I}, 0")
    lp = k.newlab("mx")
    k.lab(lp)
    k.e(f"ds_read_b128 {vr(vKf,4)}, v{vT2}")
    k.e(f"v_add_u32 v{vT2}, 1024, v{vT2}")
    k.e("s_waitcnt lgkmcnt(0)")
    k.e(f"v_mfma_f32_32x32x16_bf16 {vr(S(0,0),16)}, {vr(vKf,4)}, {vr(vQ,4)}, 0")
    k.e(f"v_mfma_f32_32x32x16_bf16 {vr(S(0,1),16)}, {vr(vKf,4)}, {vr(vQ+4,4)}, 0")
    k.e("s_nop 15")
    k.e("s_nop 3")
    for qt in range(2):
        for i in range(8):
            k.e(f"v_max3_f32 v{vT0+qt}, v{S(0,qt)+2*i}, v{S(0,qt)+2*i+1}, v{vT0+qt}")
    k.e(f"s_add_u32 s{S_I}, s{S_I}, 1")
    k.e(f"s_cmp_lt_u32 s{S_I}, 64")
    k.e(f"s_cbranch_scc1 {lp}")
    for qt in range(2):
        k.e(f"v_mov_b32 v{vT2}, v{vT0+qt}")
        k.e("s_nop 1")
        k.e(f"v_permlane32_swap_b32 v{vT0+qt}, v{vT2}")
        k.e(f"v_max_f32 v{vT2}, v{vT0+qt}, v{vT2}")
        k.e(f"v_sub_f32 v{vT2}, 0, v{vT2}")
        for i in range(16):
            k.e(f"v_mov_b32 v{vC+16*qt+i}, v{vT2}")
    for i in range(32):
        k.e(f"v_mov_b32 v{vOa+i}, 0")
    k.e("s_nop 1")
    main_pass(False)
    k.lab(fin)
    for qt in range(2):
        o = vOa + 16 * qt
        k.e(f"v_rcp_f32 v{vT0}, v{o+8}")
        k.e("s_nop 0")
        for i in range(8):
            k.e(f"v_mul_f32 v{o+i}, v{o+i}, v{vT0}")
        pk = vPk + 4 * qt
        for j in range(4):
            k.e(f"v_cvt_pk_bf16_f32 v{pk+j}, v{o+2*j}, v{o+2*j+1}")
        k.e("s_nop 1")
        k.e(f"v_permlane32_swap_b32 v{pk}, v{pk+2}")
        k.e(f"v_permlane32_swap_b32 v{pk+1}, v{pk+3}")
        k.e(f"s_mov_b32 s{S_T0}, {qt*32768}")
        k.e(f"buffer_store_dwordx4 {vr(pk,4)}, v{vO}, {sr(S_WS,4)}, s{S_T0} offen")
    k.lab(end)
    k.e("s_endpgm")
    return k, va.n, NWG, LDS


def build(extra_triv=0):
    ks = []
    ks.append(gen_gemm_ln("qkv1_kernel", "qkv", ("arg", 0)))
    at = gen_attn("attn_kernel")
    ks.append(at)
    ks.append(gen_gemm_res("wo1_kernel", "wo", ("arg", 0), ("ws", WS_X1)))
    ks.append(gen_gemm_ln("ffa1_kernel", "ffn1", ("ws", WS_X1)))
    ks.append(gen_gemm_res("ffb1_kernel", "w2", ("ws", WS_X1), ("ws", WS_X2)))
    ks.append(gen_gemm_ln("qkv2_kernel", "qkv", ("ws", WS_X2)))
    ks.append(at)
    ks.append(gen_gemm_res("wo2_kernel", "wo", ("ws", WS_X2), ("ws", WS_X3)))
    ks.append(gen_gemm_ln("ffa2_kernel", "ffn1", ("ws", WS_X3)))
    ks.append(gen_gemm_res("ffb2_kernel", "w2", ("ws", WS_X3), ("out", 0)))
    head = []
    for (k, nv, nwg, lds) in ks:
        head.append(f"; @launch kernel={k.name} grid=({nwg},1,1) block=(256,1,1) lds={lds}")
    for i in range(extra_triv):
        head.append(f"; @launch kernel=triv_kernel grid=(256,1,1) block=(256,1,1) lds=0")
    body = ['.amdgcn_target "amdgcn-amd-amdhsa--gfx950"']
    seen = set()
    for (k, nv, nwg, lds) in ks:
        if k.name in seen:
            continue
        seen.add(k.name)
        body.append(k.text(nv))
    if extra_triv:
        t = Kern("triv_kernel")
        t.e("s_endpgm")
        body.append(t.text(8))
    return "\n".join(head + body) + "\n"


if __name__ == "__main__":
    out = sys.argv[1] if len(sys.argv) > 1 else f"cdna_kernels/{NAME}.s"
    extra = int(sys.argv[2]) if len(sys.argv) > 2 else 0
    open(out, "w").write(build(extra))
    print("wrote", out)
```
